```python
import torch

def _softmax(x, axis=-1):
    return torch.softmax(x, dim=axis)
def _gelu(x):
    return torch.nn.functional.gelu(x, approximate="tanh")
def _silu(x):
    return torch.nn.functional.silu(x)
def _sigmoid(x):
    return torch.sigmoid(x)
def _layernorm(x, axis=-1, eps=1e-5):
    m = x.mean(dim=axis, keepdim=True)
    v = x.var(dim=axis, keepdim=True, unbiased=False)
    return (x - m) / torch.sqrt(v + eps)
def _scatter_add(tgt, idx, src, axis=0):
    return tgt.clone().index_add_(axis, idx, src)
def _segment_sum(src, seg, n):
    out = torch.zeros((n,) + src.shape[1:], dtype=src.dtype)
    return out.index_add_(0, seg, src)
def _pad(x, pw):
    flat = tuple(v for pair in reversed(pw) for v in pair)
    return torch.nn.functional.pad(x, flat)

kernel_name = 'standalone__w4a16_gemm_dequant__prompt'

def setup_inputs():

    _w = (lambda a: (lambda t: t.to(torch.bfloat16) if t.is_floating_point() else t)(torch.as_tensor(a)))
    B, S, D, F = 1, 2048, 1024, 3584
    G = 32 if 32 > 0 else D
    D = (D // G) * G
    ng = D // G
    qw = torch.randint(0, 16, (D, F)).to(torch.int32)
    return {
        "x": _w((lambda *s: torch.randn(*s, dtype=torch.bfloat16) * 0.05)(B, S, D)),
        "qw": _w(qw),
        "scales": _w(torch.abs((lambda *s: torch.randn(*s, dtype=torch.bfloat16) * 0.05)(ng, F)) + 0.01),
        "zeros": _w(torch.full((ng, F), 8.0, dtype=float)),
    }

def reference(x, qw, scales, zeros):
    B, S, D = x.shape
    ng, F = scales.shape
    G = D // ng
    s = (lambda x, n, axis: torch.repeat_interleave(x, n, dim=axis))(scales, G, axis=0)
    z = (lambda x, n, axis: torch.repeat_interleave(x, n, dim=axis))(zeros, G, axis=0)
    w = ((lambda x, dt: x.to(dt))(qw, x.dtype) - z) * s
    return x @ w
```

```python
KNAME = "standalone__w4a16_gemm_dequant__prompt_kernel"
M, K, N = 2048, 1024, 3584
L = []
def e(s): L.append("    " + s)
def lab(s): L.append(s + ":")

hdr = open("standalone__w4a16_gemm_dequant__prompt.s.ref").read().split("; Override")[0]
out = hdr + "; @launch grid=(448,1,1) block=(256,1,1) lds=0\n"
out += '.amdgcn_target "amdgcn-amd-amdhsa--gfx950"\n.text\n.globl %s\n.p2align 8\n.type %s,@function\n%s:\n' % (KNAME, KNAME, KNAME)

e("s_cmp_ge_u32 s2, 448")
e("s_cbranch_scc1 L_end")
e("s_load_dwordx4 s[4:7], s[0:1], 0")
e("s_load_dwordx4 s[8:11], s[0:1], 16")
e("s_load_dwordx2 s[12:13], s[0:1], 32")
e("s_and_b32 s14, s2, 31")
e("s_lshr_b32 s15, s2, 5")
e("v_and_b32 v1, 63, v0")
e("v_lshrrev_b32 v2, 6, v0")
e("v_and_b32 v3, 15, v1")
e("v_lshrrev_b32 v4, 4, v1")
e("s_waitcnt lgkmcnt(0)")
def srd(d, b, size):
    e(f"s_mov_b32 s{d}, s{b}")
    e(f"s_and_b32 s{d+1}, s{b+1}, 0xffff")
    e(f"s_mov_b32 s{d+2}, {size}")
    e(f"s_mov_b32 s{d+3}, 0x20000")
srd(16, 4, M*K*2)
srd(20, 6, K*N*4)
srd(24, 8, 32*N*2)
srd(28, 10, 32*N*2)
srd(32, 12, M*N*2)
e("s_lshl_b32 s36, s14, 6")
e("v_add_u32 v5, s36, v3")
e("v_lshlrev_b32 v5, 11, v5")
e("v_lshl_add_u32 v5, v4, 4, v5")
e("s_lshl_b32 s37, s15, 8")
e("v_lshlrev_b32 v6, 6, v2")
e("v_add_u32 v6, s37, v6")
e("v_lshl_add_u32 v6, v3, 2, v6")
e(f"s_mov_b32 s38, {8*N*4}")
e("v_mul_lo_u32 v7, v4, s38")
e("v_lshl_add_u32 v7, v6, 2, v7")
e("v_lshlrev_b32 v8, 1, v6")
e("v_lshlrev_b32 v9, 2, v4")
e("v_add_u32 v9, s36, v9")
e(f"s_mov_b32 s38, {N*2}")
e("v_mul_lo_u32 v9, v9, s38")
e("v_add_u32 v9, v9, v8")
ACC = 128
for i in range(64):
    e(f"v_mov_b32 v{ACC+i}, 0")
e("s_mov_b32 s40, 0")
e("s_mov_b32 s41, 0")
e("s_mov_b32 s42, 0")
e("s_mov_b32 s43, 0x4b800000")
lab("L_loop")
AF = 16
Q = 32
BF = 64
S = 80
for mt in range(4):
    e(f"s_add_u32 s44, s40, {mt*16*2048}")
    e(f"buffer_load_dwordx4 v[{AF+4*mt}:{AF+4*mt+3}], v5, s[16:19], s44 offen")
for i in range(8):
    e(f"s_add_u32 s44, s41, {i*N*4}")
    e(f"buffer_load_dwordx4 v[{Q+4*i}:{Q+4*i+3}], v7, s[20:23], s44 offen")
e(f"buffer_load_dwordx2 v[{S}:{S+1}], v8, s[24:27], s42 offen")
e(f"buffer_load_dwordx2 v[{S+2}:{S+3}], v8, s[28:31], s42 offen")
e("s_waitcnt vmcnt(0)")
for j in range(4):
    src = S + j//2
    zsrc = S + 2 + j//2
    if j % 2 == 0:
        e(f"v_lshlrev_b32 v92, 16, v{src}")
        e(f"v_lshlrev_b32 v93, 16, v{zsrc}")
    else:
        e(f"v_and_b32 v92, 0xffff0000, v{src}")
        e(f"v_and_b32 v93, 0xffff0000, v{zsrc}")
    e(f"v_mul_f32 v{84+j}, s43, v92")
    e(f"v_mul_f32 v{88+j}, -v92, v93".replace("v_mul_f32", "v_mul_f32_e64"))
for j in range(4):
    for p in range(4):
        e(f"v_fma_mix_f32 v94, v{Q+4*(2*p)+j}, v{84+j}, v{88+j} op_sel_hi:[1,0,0]")
        e(f"v_fma_mix_f32 v95, v{Q+4*(2*p+1)+j}, v{84+j}, v{88+j} op_sel_hi:[1,0,0]")
        e(f"v_cvt_pk_bf16_f32 v{BF+4*j+p}, v94, v95")
e("s_nop 1")
for mt in range(4):
    for j in range(4):
        a = ACC + (mt*4+j)*4
        e(f"v_mfma_f32_16x16x32_bf16 v[{a}:{a+3}], v[{AF+4*mt}:{AF+4*mt+3}], v[{BF+4*j}:{BF+4*j+3}], v[{a}:{a+3}]")
e("s_add_u32 s40, s40, 64")
e(f"s_add_u32 s41, s41, {32*N*4}")
e(f"s_add_u32 s42, s42, {N*2}")
e("s_cmp_lt_u32 s40, 2048")
e("s_cbranch_scc1 L_loop")
e("s_nop 15")
for mt in range(4):
    for r in range(4):
        a = lambda j: ACC + (mt*4+j)*4 + r
        t = 96 + ((mt*4+r) % 4)*2
        e(f"v_cvt_pk_bf16_f32 v{t}, v{a(0)}, v{a(1)}")
        e(f"v_cvt_pk_bf16_f32 v{t+1}, v{a(2)}, v{a(3)}")
        e(f"s_mov_b32 s44, {(mt*16+r)*N*2}")
        e(f"buffer_store_dwordx2 v[{t}:{t+1}], v9, s[32:35], s44 offen")
lab("L_end")
e("s_endpgm")
out += "\n".join(L) + "\n"
out += f""".section .rodata,"a"
.p2align 6
.amdhsa_kernel {KNAME}
  .amdhsa_next_free_vgpr 192
  .amdhsa_next_free_sgpr 64
  .amdhsa_accum_offset 192
  .amdhsa_group_segment_fixed_size 0
  .amdhsa_kernarg_size 56
  .amdhsa_user_sgpr_count 2
  .amdhsa_user_sgpr_kernarg_segment_ptr 1
  .amdhsa_system_sgpr_workgroup_id_x 1
.end_amdhsa_kernel
"""
open("standalone__w4a16_gemm_dequant__prompt.s", "w").write(out)
```
